```python
import torch

def _softmax(x, axis=-1):
    return torch.softmax(x, dim=axis)
def _gelu(x):
    return torch.nn.functional.gelu(x, approximate="tanh")
def _silu(x):
    return torch.nn.functional.silu(x)
def _sigmoid(x):
    return torch.sigmoid(x)
def _layernorm(x, axis=-1, eps=1e-5):
    m = x.mean(dim=axis, keepdim=True)
    v = x.var(dim=axis, keepdim=True, unbiased=False)
    return (x - m) / torch.sqrt(v + eps)
def _scatter_add(tgt, idx, src, axis=0):
    return tgt.clone().index_add_(axis, idx, src)
def _segment_sum(src, seg, n):
    out = torch.zeros((n,) + src.shape[1:], dtype=src.dtype)
    return out.index_add_(0, seg, src)
def _pad(x, pw):
    flat = tuple(v for pair in reversed(pw) for v in pair)
    return torch.nn.functional.pad(x, flat)

kernel_name = 'interleave_layers__mha_block_cached__glu_gated_bilinear__decode'

def setup_inputs():

    _w = (lambda a: (lambda t: t.to(torch.bfloat16) if t.is_floating_point() else t)(torch.as_tensor(a)))
    def _A_setup():
        B, Sq, D = 2, 1, 448
        H, Sk, Dh = 16, 8192, 256
        return {
            "x": _w((lambda *s: torch.randn(*s, dtype=torch.bfloat16) * 0.05)(B, Sq, D)),
            "k_cache": _w((lambda *s: torch.randn(*s, dtype=torch.bfloat16) * 0.8)(B, H, Sk, Dh)),
            "v_cache": _w((lambda *s: torch.randn(*s, dtype=torch.bfloat16) * 1.6)(B, H, Sk, Dh)),
            "wq": _w((lambda *s: torch.randn(*s, dtype=torch.bfloat16) * 0.8)(D, H * Dh) * (D ** -0.5)),
            "wo": _w((lambda *s: torch.randn(*s, dtype=torch.bfloat16) * 1.6)(H * Dh, D) * ((H * Dh) ** -0.5)),
        }
    _A_in = _A_setup()

    def _B_setup():
        B, S, D, F = 2, 1, 448, 1792
        return {
            "x": _w((lambda *s: torch.randn(*s, dtype=torch.bfloat16) * 0.05)(B, S, D)),
            "w_gate": _w((lambda *s: torch.randn(*s, dtype=torch.bfloat16) * 0.4)(D, F) * (D ** -0.5)),
            "w_up": _w((lambda *s: torch.randn(*s, dtype=torch.bfloat16) * 0.4)(D, F) * (D ** -0.5)),
            "w_down": _w((lambda *s: torch.randn(*s, dtype=torch.bfloat16) * 0.4)(F, D) * (F ** -0.5)),
        }
    _B_in = _B_setup()

    return {
        "A_x": _A_in["x"],
        "A_k_cache": _A_in["k_cache"],
        "A_v_cache": _A_in["v_cache"],
        "A_wq": _A_in["wq"],
        "A_wo": _A_in["wo"],
        "B_x": _B_in["x"],
        "B_w_gate": _B_in["w_gate"],
        "B_w_up": _B_in["w_up"],
        "B_w_down": _B_in["w_down"],
    }

def reference(A_x, A_k_cache, A_v_cache, A_wq, A_wo, B_x, B_w_gate, B_w_up, B_w_down):
    def _A_ref(x, k_cache, v_cache, wq, wo):
        B, Sq, D = x.shape
        H, Dh = 16, 256
        q = (lambda x, *d: x.permute(*d))((x @ wq).reshape(B, Sq, H, Dh), 0, 2, 1, 3)
        scores = torch.einsum("bhqd,bhkd->bhqk", q, k_cache) * (Dh ** -0.5)
        p = _softmax(scores, axis=-1)
        o = torch.einsum("bhqk,bhkd->bhqd", p, v_cache)
        return (lambda x, *d: x.permute(*d))(o, 0, 2, 1, 3).reshape(B, Sq, H * Dh) @ wo

    def _B_ref(x, w_gate, w_up, w_down):
        g = torch.einsum("bsd,df->bsf", x, w_gate)
        u = torch.einsum("bsd,df->bsf", x, w_up)
        h = g * u
        return torch.einsum("bsf,fd->bsd", h, w_down)

    x = A_x
    x = x + _A_ref(_layernorm(x, axis=-1), A_k_cache, A_v_cache, A_wq, A_wo)
    x = x + _B_ref(_layernorm(x, axis=-1), B_w_gate, B_w_up, B_w_down)
    x = x + _A_ref(_layernorm(x, axis=-1), A_k_cache, A_v_cache, A_wq, A_wo)
    x = x + _B_ref(_layernorm(x, axis=-1), B_w_gate, B_w_up, B_w_down)
    return x
```

```python
import re

TRANS = ("v_exp_f32", "v_rcp_f32", "v_rsq_f32", "v_sqrt_f32", "v_log_f32")
NO_DST_S = ("s_cmp", "s_cbranch", "s_waitcnt", "s_nop", "s_barrier", "s_sleep", "s_endpgm",
            "s_branch", "s_setprio")


def parse_regs(op):
    op = op.strip()
    op = op.lstrip("-")
    if op.startswith("abs(") or op.startswith("|"):
        op = op.strip("abs()|")
    m = re.fullmatch(r"([vsa])(\d+)", op)
    if m:
        return [(m.group(1), int(m.group(2)))]
    m = re.fullmatch(r"([vsa])\[(\d+):(\d+)\]", op)
    if m:
        return [(m.group(1), i) for i in range(int(m.group(2)), int(m.group(3)) + 1)]
    if op == "vcc":
        return [("s", 106), ("s", 107)]
    if op == "vcc_lo":
        return [("s", 106)]
    if op == "vcc_hi":
        return [("s", 107)]
    if op == "exec":
        return [("s", 126), ("s", 127)]
    if op == "exec_lo":
        return [("s", 126)]
    if op == "exec_hi":
        return [("s", 127)]
    if op == "m0":
        return [("s", 124)]
    return []


class Ins:
    __slots__ = ("text", "op", "wr", "rd", "valu", "trans", "dot", "dpp", "perml", "rdlane",
                 "vmem", "ds", "salu", "states", "widestore", "ldsdma", "srcC", "lanesel")


def analyze(text):
    t = text.split(";")[0].strip()
    parts = t.split(None, 1)
    op = parts[0]
    rest = parts[1] if len(parts) > 1 else ""
    ops = []
    depth = 0
    cur = ""
    for ch in rest:
        if ch == "[":
            depth += 1
        if ch == "]":
            depth -= 1
        if ch == "," and depth == 0:
            ops.append(cur.strip())
            cur = ""
        else:
            cur += ch
    if cur.strip():
        ops.append(cur.strip())
    mods = ""
    if ops:
        sp = ops[-1].split(None, 1)
        ops[-1] = sp[0]
        mods = sp[1] if len(sp) > 1 else ""
    I = Ins()
    I.text = text
    I.op = op
    I.valu = op.startswith("v_") and op != "v_nop"
    I.trans = any(op.startswith(x) for x in TRANS)
    I.dot = op.startswith("v_dot")
    I.dpp = ("quad_perm" in mods) or ("row_" in mods)
    I.perml = op.startswith("v_permlane")
    I.rdlane = op.startswith("v_readlane") or op.startswith("v_readfirstlane")
    I.vmem = op.startswith("buffer_") or op.startswith("global_")
    I.ds = op.startswith("ds_")
    I.salu = op.startswith("s_")
    I.states = 1
    I.widestore = False
    I.ldsdma = False
    I.srcC = []
    I.lanesel = []
    wr, rd = [], []
    R = [parse_regs(o) for o in ops]
    if op == "s_nop":
        I.states = int(ops[0], 0) + 1
    elif I.valu:
        if I.perml:
            wr = R[0] + R[1]
            rd = R[0] + R[1]
        elif op.startswith("v_add_co") or op.startswith("v_addc_co") or op.startswith("v_sub_co"):
            wr = R[0] + R[1]
            rd = sum(R[2:], [])
        else:
            wr = R[0]
            rd = sum(R[1:], [])
            if op.startswith("v_fmac") or op.startswith("v_dot2c") or op.startswith("v_writelane"):
                rd = rd + R[0]
            if op.startswith("v_dot2_"):
                I.srcC = R[3] if len(R) > 3 else []
            if op.startswith("v_dot2c"):
                I.srcC = R[0]
            if op.startswith("v_readlane") or op.startswith("v_writelane"):
                I.lanesel = R[2] if len(R) > 2 else []
    elif I.vmem:
        if "_load" in op:
            if " lds" in (" " + mods) or op.startswith("global_load_lds"):
                I.ldsdma = True
                rd = sum(R, []) + [("s", 124)]
            else:
                wr = R[0]
                rd = sum(R[1:], [])
        elif "_store" in op:
            rd = sum(R, [])
            if "x4" in op or "x3" in op:
                I.widestore = True
                I.srcC = R[0] if op.startswith("buffer_") else R[1]
        else:
            rd = sum(R, [])
    elif I.ds:
        if op.startswith("ds_read") or op.startswith("ds_bpermute"):
            wr = R[0]
            rd = sum(R[1:], [])
        else:
            rd = sum(R, [])
    elif I.salu:
        if any(op.startswith(x) for x in NO_DST_S):
            rd = sum(R, [])
        else:
            wr = R[0] if R else []
            rd = sum(R[1:], [])
    I.wr = set(wr)
    I.rd = set(rd)
    return I


def need(prev, cur):
    n = 0
    pv = {r for r in prev.wr if r[0] == "v"}
    ps = {r for r in prev.wr if r[0] == "s"}
    if prev.valu:
        if pv & cur.rd:
            if cur.dpp:
                n = max(n, 2)
            if cur.rdlane:
                n = max(n, 1)
            if cur.perml:
                n = max(n, 2)
            if prev.trans and cur.valu and not cur.trans:
                n = max(n, 1)
            if prev.trans and (cur.vmem or cur.ds):
                n = max(n, 1)
        if prev.dot and (pv & (cur.rd | cur.wr)):
            same_c = cur.dot and cur.op == prev.op and not (pv & (cur.rd - set(cur.srcC)))
            if not same_c:
                n = max(n, 3)
        if ps & cur.rd:
            if cur.valu:
                n = max(n, 2)
                if set(cur.lanesel) & ps:
                    n = max(n, 4)
            if cur.vmem:
                n = max(n, 5)
            if cur.salu:
                n = max(n, 1)
        if ps & {("s", 126), ("s", 127)}:
            n = max(n, 5)
    if prev.salu and (("s", 124) in prev.wr) and cur.ldsdma:
        n = max(n, 1)
    if prev.widestore and (set(prev.srcC) & cur.wr):
        n = max(n, 2 if cur.valu else 1)
    return n


class Asm:
    def __init__(self):
        self.lines = []
        self.hist = []
        self.vm = []
        self.lg = []
        self.ninstr = 0
        self.uid = 0

    def raw(self, s):
        self.lines.append(s)

    def comment(self, s):
        self.lines.append("; " + s)

    def label(self, name):
        self.lines.append(name + ":")
        self.hist = []
        self._emit_plain("s_nop 4")

    def newlabel(self, base):
        self.uid += 1
        return "L_%s_%d" % (base, self.uid)

    def _emit_plain(self, text):
        I = analyze(text)
        self.lines.append(text)
        self.hist.append(I)
        self.hist = self.hist[-8:]
        self.ninstr += 1

    def __call__(self, text):
        I = analyze(text)
        dist = 0
        pad = 0
        for p in reversed(self.hist):
            r = need(p, I)
            if r > dist:
                pad = max(pad, r - dist)
            dist += p.states
            if dist >= 6:
                break
        if pad > 0:
            self._emit_plain("s_nop %d" % (pad - 1))
        self._emit_plain(text)
        return I

    def vmem(self, text, tok=None):
        self(text)
        if tok is None:
            self.uid += 1
            tok = ("anon", self.uid)
        self.vm.append(tok)
        assert len(self.vm) <= 63, "too many outstanding vmem ops"
        return tok

    def wait_vm(self, tok):
        if tok not in self.vm:
            return
        i = self.vm.index(tok)
        n = len(self.vm) - 1 - i
        self("s_waitcnt vmcnt(%d)" % n)
        self.vm = self.vm[i + 1:]

    def wait_vm_all(self):
        self("s_waitcnt vmcnt(0)")
        self.vm = []

    def lds(self, text, tok=None):
        self(text)
        if tok is None:
            self.uid += 1
            tok = ("anon", self.uid)
        self.lg.append(tok)
        assert len(self.lg) <= 15, "too many outstanding lds ops"
        return tok

    def wait_lg(self, tok):
        if tok not in self.lg:
            return
        i = self.lg.index(tok)
        n = len(self.lg) - 1 - i
        self("s_waitcnt lgkmcnt(%d)" % n)
        self.lg = self.lg[i + 1:]

    def wait_lg_all(self):
        if self.lg:
            self("s_waitcnt lgkmcnt(0)")
        self.lg = []

    def text(self):
        return "\n".join(self.lines) + "\n"


def vr(base, n):
    return "v[%d:%d]" % (base, base + n - 1) if n > 1 else "v%d" % base


def sr(base, n):
    return "s[%d:%d]" % (base, base + n - 1) if n > 1 else "s%d" % base
```

```python
import sys
from collections import deque
from asmlib import Asm, vr, sr

KNAME = "interleave_layers__mha_block_cached__glu_gated_bilinear__decode_kernel"

NL = 17
CAP = 40
MINFREE = 8
R0_FRAC = 0.40
NCHAIN_TMP = 64
SPIN_LIMIT = 400000

A_BASE, A_STR = 0x100000, 0x80000
ML_BASE, ML_STR = 0x300000, 0x1000
B1_BASE, B1_STR = 0x400000, 0x100000
C1_BASE, C1_STR = 0x800000, 0x100000
X1_BASE, X1_STR = 0xC00000, 0x1000
X2_BASE, X2_STR = 0xC10000, 0x1000
D_BASE, D_STR = 0xC20000, 0x8000

LDS_TILES = 0
LDS_SO = 8 * NL * 1024
LDS_SML = LDS_SO + 16384
LDS_TOTAL = LDS_SML + 128
assert LDS_TOTAL <= 163840

S_K, S_V, S_WQ, S_WO, S_WG, S_WU, S_WD, S_X, S_OUT, S_DBG, S_WS = 4, 8, 12, 16, 20, 24, 28, 32, 36, 40, 44
S_WAVE, S_H, S_SP, S_KB0, S_KB1, S_LDSW = 48, 49, 50, 51, 52, 53
S_TLO, S_THI = 54, 55
S_T0, S_T1, S_T2, S_T3 = 56, 57, 58, 59
S_SPIN = 60
S_FF = 61
S_HI = 62
S_O = 64
S_G = 2

V_L16, V_LDST, V_LANE = 1, 2, 3
V_Q = 4
V_ACC = 8
V_S = 16
V_M, V_L = 24, 25
V_X = 26
V_Y = 30
V_LT = 34
V_TLO, V_THI = 50, 51
V_XC = 52
V_T = 53
V_POOL = 56
LOG2E = "0x3fb8aa3b"


class Gen:
    def __init__(self):
        self.a = Asm()

    def allreduce(self, regs, op, bits, tmps):
        a = self.a
        dpp = {0: "quad_perm:[1,0,3,2]", 1: "quad_perm:[2,3,0,1]", 2: "row_ror:4", 3: "row_ror:8"}
        for b in bits:
            if b <= 3:
                for r in regs:
                    a("%s_dpp v%d, v%d, v%d %s" % (op, r, r, r, dpp[b]))
            else:
                sw = "v_permlane16_swap_b32" if b == 4 else "v_permlane32_swap_b32"
                for r, t in zip(regs, tmps):
                    a("v_mov_b32 v%d, v%d" % (t, r))
                for r, t in zip(regs, tmps):
                    a("%s v%d, v%d" % (sw, r, t))
                for r, t in zip(regs, tmps):
                    a("%s v%d, v%d, v%d" % (op, r, r, t))

    def bf16r(self, regs):
        a = self.a
        for r in regs:
            a("v_cvt_pk_bf16_f32 v%d, v%d, v%d" % (r, r, r))
        for r in regs:
            a("v_and_b32 v%d, s%d, v%d" % (r, S_HI, r))

    def mk_granule(self, g, x):
        a = self.a
        a("v_add_u32 v%d, 0x80, v%d" % (g + 1, x))
        a("v_and_b32 v%d, 0xffffff00, v%d" % (g + 1, g + 1))
        a("v_or_b32 v%d, v%d, v%d" % (g + 1, V_THI, g + 1))
        a("v_mov_b32 v%d, v%d" % (g, V_TLO))

    def poll(self, loads, grans, bad, t0, name):
        a = self.a
        lab = a.newlabel("poll_" + name)
        done = a.newlabel("done_" + name)
        a("s_mov_b32 s%d, 0" % S_SPIN)
        a.label(lab)
        for l in loads:
            a.vmem(l)
        a.wait_vm_all()
        a("v_mov_b32 v%d, 0" % bad)
        for g in grans:
            a("v_xor_b32 v%d, v%d, v%d" % (t0, V_THI, g + 1))
            a("v_and_or_b32 v%d, v%d, s%d, v%d" % (bad, t0, S_FF, bad))
            a("v_xor_b32 v%d, v%d, v%d" % (t0, V_TLO, g))
            a("v_or_b32 v%d, v%d, v%d" % (bad, t0, bad))
        a("v_cmp_ne_u32 vcc, 0, v%d" % bad)
        a("s_cbranch_vccz %s" % done)
        a("s_sleep 1")
        a("s_add_u32 s%d, s%d, 1" % (S_SPIN, S_SPIN))
        a("s_cmp_lt_u32 s%d, %d" % (S_SPIN, SPIN_LIMIT))
        a("s_cbranch_scc1 %s" % lab)
        a("s_endpgm")
        a.label(done)
        for g in grans:
            a("v_and_b32 v%d, 0xffffff00, v%d" % (g + 1, g + 1))

    def unpack_fma(self, acc, w, scal, t0, t1, first=False):
        a = self.a
        for j in range(4):
            a("v_lshlrev_b32 v%d, 16, v%d" % (t0, w + j))
            a("v_and_b32 v%d, s%d, v%d" % (t1, S_HI, w + j))
            if first:
                a("v_mul_f32 v%d, %s, v%d" % (acc + 2 * j, scal, t0))
                a("v_mul_f32 v%d, %s, v%d" % (acc + 2 * j + 1, scal, t1))
            else:
                a("v_fmac_f32 v%d, %s, v%d" % (acc + 2 * j, scal, t0))
                a("v_fmac_f32 v%d, %s, v%d" % (acc + 2 * j + 1, scal, t1))

    def layernorm(self, x, T):
        a = self.a
        s, t, mean, var, d0 = T[0], T[1], T[2], T[3], T[4:11]
        a("v_add_f32 v%d, v%d, v%d" % (s, x[0], x[1]))
        for i in range(2, 7):
            a("v_add_f32 v%d, v%d, v%d" % (s, s, x[i]))
        self.allreduce([s], "v_add_f32", range(6), [t])
        a("v_mul_f32 v%d, 0x3b124925, v%d" % (mean, s))
        for i in range(7):
            a("v_sub_f32 v%d, v%d, v%d" % (d0[i], x[i], mean))
        a("v_mul_f32 v%d, v%d, v%d" % (var, d0[0], d0[0]))
        for i in range(1, 7):
            a("v_fmac_f32 v%d, v%d, v%d" % (var, d0[i], d0[i]))
        self.allreduce([var], "v_add_f32", range(6), [t])
        a("v_mul_f32 v%d, 0x3b124925, v%d" % (var, var))
        self.bf16r([var, mean])
        a("v_add_f32 v%d, 0x3727c5ac, v%d" % (var, var))
        self.bf16r([var])
        a("v_sqrt_f32 v%d, v%d" % (var, var))
        self.bf16r([var])
        a("v_rcp_f32 v%d, v%d" % (s, var))
        for i in range(7):
            a("v_sub_f32 v%d, v%d, v%d" % (x[i], x[i], mean))
        self.bf16r(x)
        for i in range(7):
            a("v_mul_f32 v%d, v%d, v%d" % (d0[i], x[i], s))
        for i in range(7):
            a("v_fma_f32 v%d, -v%d, v%d, v%d" % (x[i], d0[i], var, x[i]))
        for i in range(7):
            a("v_fma_f32 v%d, v%d, v%d, v%d" % (x[i], x[i], s, d0[i]))
        self.bf16r(x)

    def publish_partial(self, acc, base, T):
        a = self.a
        ad = T[0]
        g = T[2:18] if T[2] % 2 == 0 else T[1:17]
        g0 = g[0]
        a("v_lshlrev_b32 v%d, 14, v%d" % (ad, V_LANE))
        a("s_lshl_b32 s%d, s%d, 5" % (S_T0, S_G))
        a("s_add_u32 s%d, s%d, 0x%x" % (S_T0, S_T0, base))
        a("s_add_u32 s%d, s%d, 0x2000" % (S_T1, S_T0))
        for i in range(8):
            self.mk_granule(g0 + 2 * i, acc + i)
        a("s_mov_b32 exec_hi, 0x00ffffff")
        a.vmem("buffer_store_dwordx4 %s, v%d, %s, s%d offen sc1" % (vr(g0, 4), ad, sr(S_WS, 4), S_T0))
        a.vmem("buffer_store_dwordx4 %s, v%d, %s, s%d offen offset:16 sc1" % (vr(g0 + 4, 4), ad, sr(S_WS, 4), S_T0))
        a.vmem("buffer_store_dwordx4 %s, v%d, %s, s%d offen sc1" % (vr(g0 + 8, 4), ad, sr(S_WS, 4), S_T1))
        a.vmem("buffer_store_dwordx4 %s, v%d, %s, s%d offen offset:16 sc1" % (vr(g0 + 12, 4), ad, sr(S_WS, 4), S_T1))
        a("s_mov_b32 exec_hi, -1")

    def s1(self, inst, buf, T):
        a = self.a
        a.comment("S1 inst %d" % inst)
        o = T[0:32]
        ml = T[32:48]
        ad, M, L, f, t = T[48], T[49], T[50], T[51], T[52]
        acc = T[54:58]
        a("v_lshlrev_b32 v%d, 4, v%d" % (ad, V_LANE))
        a("v_add_u32 v%d, 0x%x, v%d" % (ad, LDS_SO + buf * 8192, ad))
        for w in range(8):
            a.lds("ds_read_b128 %s, v%d offset:%d" % (vr(o[4 * w], 4), ad, w * 1024))
        a("v_mov_b32 v%d, 0x%x" % (t, LDS_SML + buf * 64))
        for i in range(4):
            a.lds("ds_read_b128 %s, v%d offset:%d" % (vr(ml[4 * i], 4), t, i * 16))
        a.wait_lg_all()
        a("v_max_f32 v%d, v%d, v%d" % (M, ml[0], ml[2]))
        for w in range(2, 8):
            a("v_max_f32 v%d, v%d, v%d" % (M, M, ml[2 * w]))
        for w in range(8):
            a("v_sub_f32 v%d, v%d, v%d" % (ml[2 * w], ml[2 * w], M))
        for w in range(8):
            a("v_mul_f32 v%d, %s, v%d" % (ml[2 * w], LOG2E, ml[2 * w]))
        for w in range(8):
            a("v_exp_f32 v%d, v%d" % (ml[2 * w], ml[2 * w]))
        a("v_mul_f32 v%d, v%d, v%d" % (L, ml[0], ml[1]))
        for w in range(1, 8):
            a("v_fmac_f32 v%d, v%d, v%d" % (L, ml[2 * w], ml[2 * w + 1]))
        for i in range(4):
            a("v_mul_f32 v%d, v%d, v%d" % (acc[i], ml[0], o[i]))
        for w in range(1, 8):
            for i in range(4):
                a("v_fmac_f32 v%d, v%d, v%d" % (acc[i], ml[2 * w], o[4 * w + i]))
        g = o[0]
        for i in range(4):
            self.mk_granule(g + 2 * i, acc[i])
        self.mk_granule(g + 8, M)
        self.mk_granule(g + 10, L)
        a("v_lshrrev_b32 v%d, 2, v%d" % (ad, V_LANE))
        a("v_lshlrev_b32 v%d, 11, v%d" % (ad, ad))
        a("v_and_b32 v%d, 3, v%d" % (t, V_LANE))
        a("v_lshl_add_u32 v%d, v%d, 5, v%d" % (ad, t, ad))
        a("s_lshl_b32 s%d, s%d, 15" % (S_T0, S_H))
        a("s_lshl_b32 s%d, s%d, 7" % (S_T1, S_SP))
        a("s_add_u32 s%d, s%d, s%d" % (S_T0, S_T0, S_T1))
        a("s_add_u32 s%d, s%d, 0x%x" % (S_T0, S_T0, A_BASE + inst * A_STR))
        a.vmem("buffer_store_dwordx4 %s, v%d, %s, s%d offen sc1" % (vr(g, 4), ad, sr(S_WS, 4), S_T0))
        a.vmem("buffer_store_dwordx4 %s, v%d, %s, s%d offen offset:16 sc1" % (vr(g + 4, 4), ad, sr(S_WS, 4), S_T0))
        a("s_lshl_b32 s%d, s%d, 8" % (S_T0, S_H))
        a("s_lshl_b32 s%d, s%d, 4" % (S_T1, S_SP))
        a("s_add_u32 s%d, s%d, s%d" % (S_T0, S_T0, S_T1))
        a("s_add_u32 s%d, s%d, 0x%x" % (S_T0, S_T0, ML_BASE + inst * ML_STR))
        a("v_mov_b32 v%d, 0" % t)
        a("s_mov_b64 exec, 1")
        a.vmem("buffer_store_dwordx4 %s, v%d, %s, s%d offen sc1" % (vr(g + 8, 4), t, sr(S_WS, 4), S_T0))
        a("s_mov_b64 exec, -1")

    def s2(self, inst, T):
        a = self.a
        a.comment("S2 inst %d" % inst)
        G = T[0:12]
        ad, ad2, bad, t0, t1, M = T[12], T[13], T[14], T[15], T[16], T[17]
        acc = T[18:26]
        tm = T[26:32]
        W = T[32:]
        nrow = min(16, len(W) // 4)
        assert nrow >= 4
        a("s_lshl_b32 s%d, s%d, 8" % (S_T2, S_H))
        a("s_lshl_b32 s%d, s%d, 4" % (S_T3, S_SP))
        a("s_add_u32 s%d, s%d, s%d" % (S_T2, S_T2, S_T3))
        a("s_mul_i32 s%d, s%d, 896" % (S_T2, S_T2))

        def load_rows(d0, n):
            a("s_mov_b32 exec_hi, 0x00ffffff")
            toks = []
            for i in range(n):
                d = d0 + i
                a("s_add_u32 s%d, s%d, %d" % (S_T3, S_T2, d * 896))
                toks.append(a.vmem("buffer_load_dwordx4 %s, v%d, %s, s%d offen" % (vr(W[4 * i], 4), V_L16, sr(S_WO, 4), S_T3)))
            a("s_mov_b32 exec_hi, -1")
            return toks
        load_rows(0, nrow)
        a("v_lshlrev_b32 v%d, 5, v%d" % (ad, V_LANE))
        a("v_lshrrev_b32 v%d, 2, v%d" % (ad2, V_LANE))
        a("v_lshlrev_b32 v%d, 4, v%d" % (ad2, ad2))
        a("s_lshl_b32 s%d, s%d, 15" % (S_T0, S_H))
        a("s_lshl_b32 s%d, s%d, 11" % (S_T1, S_SP))
        a("s_add_u32 s%d, s%d, s%d" % (S_T0, S_T0, S_T1))
        a("s_add_u32 s%d, s%d, 0x%x" % (S_T0, S_T0, A_BASE + inst * A_STR))
        a("s_lshl_b32 s%d, s%d, 8" % (S_T1, S_H))
        a("s_add_u32 s%d, s%d, 0x%x" % (S_T1, S_T1, ML_BASE + inst * ML_STR))
        loads = [
            "buffer_load_dwordx4 %s, v%d, %s, s%d offen sc1" % (vr(G[0], 4), ad, sr(S_WS, 4), S_T0),
            "buffer_load_dwordx4 %s, v%d, %s, s%d offen offset:16 sc1" % (vr(G[4], 4), ad, sr(S_WS, 4), S_T0),
            "buffer_load_dwordx4 %s, v%d, %s, s%d offen sc1" % (vr(G[8], 4), ad2, sr(S_WS, 4), S_T1),
        ]
        self.poll(loads, [G[0], G[2], G[4], G[6], G[8], G[10]], bad, t0, "s2")
        o = [G[1], G[3], G[5], G[7]]
        mp, lp = G[9], G[11]
        a("v_mov_b32 v%d, v%d" % (M, mp))
        self.allreduce([M], "v_max_f32", [2, 3, 4, 5], [t0])
        a("v_sub_f32 v%d, v%d, v%d" % (mp, mp, M))
        a("v_mul_f32 v%d, %s, v%d" % (mp, LOG2E, mp))
        a("v_exp_f32 v%d, v%d" % (mp, mp))
        for r in o + [lp]:
            a("v_mul_f32 v%d, v%d, v%d" % (r, mp, r))
        self.allreduce(o + [lp], "v_add_f32", [2, 3, 4, 5], tm[0:5])
        a("v_rcp_f32 v%d, v%d" % (t0, lp))
        for i, r in enumerate(o):
            a("v_mul_f32 v%d, v%d, v%d" % (tm[i], r, t0))
        for i, r in enumerate(o):
            a("v_fma_f32 v%d, -v%d, v%d, v%d" % (r, tm[i], lp, r))
        for i, r in enumerate(o):
            a("v_fma_f32 v%d, v%d, v%d, v%d" % (r, r, t0, tm[i]))
        self.bf16r(o)
        for sub in range(4):
            for i in range(4):
                a("v_readlane_b32 s%d, v%d, %d" % (S_O + 4 * sub + i, o[i], sub))
        d0 = 0
        while d0 < 16:
            n = min(nrow, 16 - d0)
            if d0 > 0:
                load_rows(d0, n)
                a.wait_vm_all()
            for i in range(n):
                self.unpack_fma(acc[0], W[4 * i], "s%d" % (S_O + d0 + i), t0, t1, first=(d0 + i == 0))
            d0 += n
        self.publish_partial(acc[0], B1_BASE + inst * B1_STR, W)

    def reducer(self, inst, b, L, stage, T):
        a = self.a
        a.comment("reducer stage %d inst %d" % (stage, inst))
        skip = a.newlabel("skipred")
        a("s_cmp_ge_u32 s%d, 112" % S_G)
        a("s_cbranch_scc1 %s" % skip)
        nld = 8 if stage == 0 else 7
        G = T[0:32]
        bad, t0, ad, x0, x1 = T[32], T[33], T[34], T[35], T[36]
        tm = T[37:39]
        base = (B1_BASE + inst * B1_STR) if stage == 0 else (C1_BASE + inst * C1_STR)
        vm_save = list(a.vm)
        if stage == 0 and L == 0:
            a("v_and_b32 v%d, 1, v%d" % (ad, V_LANE))
            a("v_lshlrev_b32 v%d, 2, v%d" % (ad, ad))
            a("s_lshl_b32 s%d, s%d, 3" % (S_T0, S_G))
            a("s_add_u32 s%d, s%d, %d" % (S_T0, S_T0, b * 896))
            a.vmem("buffer_load_dword v%d, v%d, %s, s%d offen" % (V_XC, ad, sr(S_X, 4), S_T0))
        a("s_lshl_b32 s%d, s%d, 13" % (S_T0, S_G))
        a("s_add_u32 s%d, s%d, 0x%x" % (S_T0, S_T0, base))
        a("s_add_u32 s%d, s%d, 0x1000" % (S_T1, S_T0))
        loads = []
        for i in range(nld):
            loads.append("buffer_load_dwordx4 %s, v%d, %s, s%d offen offset:%d sc1" % (
                vr(G[4 * i], 4), V_L16, sr(S_WS, 4), S_T0 if i < 4 else S_T1, (i & 3) * 1024))
        self.poll(loads, [G[2 * i] for i in range(2 * nld)], bad, t0, "red")
        a("v_add_f32 v%d, v%d, v%d" % (x0, G[1], G[5]))
        a("v_add_f32 v%d, v%d, v%d" % (x1, G[3], G[7]))
        for i in range(2, nld):
            a("v_add_f32 v%d, v%d, v%d" % (x0, x0, G[4 * i + 1]))
            a("v_add_f32 v%d, v%d, v%d" % (x1, x1, G[4 * i + 3]))
        self.allreduce([x0, x1], "v_add_f32", [1, 2, 3, 4, 5], tm)
        self.bf16r([x0, x1])
        a("v_lshlrev_b32 v%d, 16, v%d" % (tm[0], V_XC))
        a("v_and_b32 v%d, s%d, v%d" % (tm[1], S_HI, V_XC))
        a("v_add_f32 v%d, v%d, v%d" % (x0, x0, tm[0]))
        a("v_add_f32 v%d, v%d, v%d" % (x1, x1, tm[1]))
        a("v_cvt_pk_bf16_f32 v%d, v%d, v%d" % (V_XC, x0, x1))
        if stage == 1 and L == 1:
            a("v_lshlrev_b32 v%d, 2, v%d" % (ad, V_LANE))
            a("s_lshl_b32 s%d, s%d, 3" % (S_T0, S_G))
            a("s_add_u32 s%d, s%d, %d" % (S_T0, S_T0, b * 896))
            a("s_mov_b64 exec, 3")
            a.vmem("buffer_store_dword v%d, v%d, %s, s%d offen" % (V_XC, ad, sr(S_OUT, 4), S_T0))
            a("s_mov_b64 exec, -1")
        else:
            a("v_lshlrev_b32 v%d, 16, v%d" % (x0, V_XC))
            a("v_and_b32 v%d, s%d, v%d" % (x1, S_HI, V_XC))
            self.mk_granule(G[0], x0)
            self.mk_granule(G[2], x1)
            xb = (X1_BASE + inst * X1_STR) if stage == 0 else (X2_BASE + inst * X2_STR)
            a("s_lshl_b32 s%d, s%d, 5" % (S_T0, S_G))
            a("s_add_u32 s%d, s%d, 0x%x" % (S_T0, S_T0, xb))
            a("s_mov_b64 exec, 3")
            a.vmem("buffer_store_dwordx4 %s, v%d, %s, s%d offen sc1" % (vr(G[0], 4), V_L16, sr(S_WS, 4), S_T0))
            a("s_mov_b64 exec, -1")
        a.wait_vm_all()
        a.label(skip)
        a.vm = vm_save

    def gather_x(self, base, X, bad, t0, name):
        a = self.a
        ad = t0 + 1
        a("v_lshlrev_b32 v%d, 3, v%d" % (ad, V_LANE))
        a("s_mov_b32 s%d, 0x%x" % (S_T0, base))
        loads = ["buffer_load_dwordx2 %s, v%d, %s, s%d offen offset:%d sc1" % (vr(X[2 * i], 2), ad, sr(S_WS, 4), S_T0, i * 512)
                 for i in range(7)]
        self.poll(loads, [X[2 * i] for i in range(7)], bad, t0, name)

    def s4(self, inst, T):
        a = self.a
        a.comment("S4 inst %d" % inst)
        skip = a.newlabel("skips4")
        a("s_cmp_ge_u32 s%d, 224" % S_G)
        a("s_cbranch_scc1 %s" % skip)
        vm_save = list(a.vm)
        X = T[0:14]
        bad, t0, t1 = T[14], T[15], T[16]
        ad = T[17]
        ag = T[18:26]
        au = T[26:34]
        W = T[34:]
        ng = min(7, len(W) // 8)
        assert ng >= 1 and len(W) >= 30
        a("v_mul_u32_u24 v%d, 3584, v%d" % (ad, V_LANE))
        a("s_lshl_b32 s%d, s%d, 4" % (S_T2, S_G))

        def load_gu(i0, n):
            for i in range(n):
                a("s_add_u32 s%d, s%d, %d" % (S_T3, S_T2, (i0 + i) * 64 * 3584))
                a.vmem("buffer_load_dwordx4 %s, v%d, %s, s%d offen" % (vr(W[8 * i], 4), ad, sr(S_WG, 4), S_T3))
                a.vmem("buffer_load_dwordx4 %s, v%d, %s, s%d offen" % (vr(W[8 * i + 4], 4), ad, sr(S_WU, 4), S_T3))
        load_gu(0, ng)
        self.gather_x(X1_BASE + inst * X1_STR, X, bad, t0, "s4")
        xr = [X[2 * i + 1] for i in range(7)]
        self.layernorm(xr, list(ag) + list(au))
        i0 = 0
        while i0 < 7:
            n = min(ng, 7 - i0)
            if i0 > 0:
                load_gu(i0, n)
                a.wait_vm_all()
            for i in range(n):
                self.unpack_fma(ag[0], W[8 * i], "v%d" % xr[i0 + i], t0, t1, first=(i0 + i == 0))
                self.unpack_fma(au[0], W[8 * i + 4], "v%d" % xr[i0 + i], t0, t1, first=(i0 + i == 0))
            i0 += n
        nr = min(8, (len(W) - 16) // 4)
        a("s_mul_i32 s%d, s%d, %d" % (S_T2, S_G, 8 * 896))
        WD = W[16:]

        def load_d(r0, n):
            a("s_mov_b32 exec_hi, 0x00ffffff")
            for i in range(n):
                a("s_add_u32 s%d, s%d, %d" % (S_T3, S_T2, (r0 + i) * 896))
                a.vmem("buffer_load_dwordx4 %s, v%d, %s, s%d offen" % (vr(WD[4 * i], 4), V_L16, sr(S_WD, 4), S_T3))
            a("s_mov_b32 exec_hi, -1")
        load_d(0, nr)
        self.allreduce(list(ag) + list(au), "v_add_f32", range(6), W[0:16])
        self.bf16r(list(ag) + list(au))
        for c in range(8):
            a("v_mul_f32 v%d, v%d, v%d" % (ag[c], ag[c], au[c]))
        self.bf16r(list(ag))
        r0 = 0
        while r0 < 8:
            n = min(nr, 8 - r0)
            if r0 > 0:
                load_d(r0, n)
            a.wait_vm_all()
            for i in range(n):
                self.unpack_fma(au[0], WD[4 * i], "v%d" % ag[r0 + i], t0, t1, first=(r0 + i == 0))
            r0 += n
        self.publish_partial(au[0], C1_BASE + inst * C1_STR, T[0:18])
        a.wait_vm_all()
        a.label(skip)
        a.vm = vm_save

    def s6(self, b, L, T):
        a = self.a
        a.comment("S6 b %d L %d" % (b, L))
        X = T[0:14]
        bad, t0, t1 = T[14], T[15], T[16]
        ad = T[17]
        aq = T[18:34]
        W = T[34:]
        ng = min(7, len(W) // 8)
        a("v_lshlrev_b32 v%d, 13, v%d" % (ad, V_LANE))
        a("s_lshl_b32 s%d, s%d, 9" % (S_T2, S_H))
        a("s_lshl_b32 s%d, s%d, 5" % (S_T3, S_SP))
        a("s_add_u32 s%d, s%d, s%d" % (S_T2, S_T2, S_T3))

        def load_q(i0, n):
            for i in range(n):
                a("s_add_u32 s%d, s%d, %d" % (S_T3, S_T2, (i0 + i) * 64 * 8192))
                a.vmem("buffer_load_dwordx4 %s, v%d, %s, s%d offen" % (vr(W[8 * i], 4), ad, sr(S_WQ, 4), S_T3))
                a.vmem("buffer_load_dwordx4 %s, v%d, %s, s%d offen offset:16" % (vr(W[8 * i + 4], 4), ad, sr(S_WQ, 4), S_T3))
        load_q(0, ng)
        xr = [X[2 * i + 1] for i in range(7)]
        if L == 0:
            a("v_lshlrev_b32 v%d, 1, v%d" % (t0, V_LANE))
            for i in range(7):
                a.vmem("buffer_load_ushort v%d, v%d, %s, 0 offen offset:%d" % (xr[i], t0, sr(S_X, 4), b * 896 + i * 128))
            a.wait_vm_all()
            for i in range(7):
                a("v_lshlrev_b32 v%d, 16, v%d" % (xr[i], xr[i]))
        else:
            self.gather_x(X2_BASE + b * X2_STR, X, bad, t0, "s6")
        self.layernorm(xr, list(aq))
        i0 = 0
        while i0 < 7:
            n = min(ng, 7 - i0)
            if i0 > 0:
                load_q(i0, n)
                a.wait_vm_all()
            for i in range(n):
                self.unpack_fma(aq[0], W[8 * i], "v%d" % xr[i0 + i], t0, t1, first=(i0 + i == 0))
                self.unpack_fma(aq[8], W[8 * i + 4], "v%d" % xr[i0 + i], t0, t1, first=(i0 + i == 0))
            i0 += n
        self.allreduce(list(aq), "v_add_f32", range(6), W[0:16])
        self.bf16r(list(aq))
        g = W[0] if W[0] % 2 == 0 else W[1]
        inst = L * 2 + b
        a("s_lshl_b32 s%d, s%d, 11" % (S_T0, S_H))
        a("s_lshl_b32 s%d, s%d, 7" % (S_T1, S_SP))
        a("s_add_u32 s%d, s%d, s%d" % (S_T0, S_T0, S_T1))
        a("s_add_u32 s%d, s%d, 0x%x" % (S_T0, S_T0, D_BASE + inst * D_STR))
        a("v_mov_b32 v%d, 0" % ad)
        for half in range(2):
            for i in range(8):
                self.mk_granule(g + 2 * i, aq[8 * half + i])
            a("s_mov_b64 exec, 1")
            for i in range(4):
                a.vmem("buffer_store_dwordx4 %s, v%d, %s, s%d offen offset:%d sc1" % (vr(g + 4 * i, 4), ad, sr(S_WS, 4), S_T0, half * 64 + i * 16))
            a("s_mov_b64 exec, -1")
            if half == 0:
                a.wait_vm_all()

    def s7(self, inst):
        a = self.a
        a.comment("S7 inst %d" % inst)
        G = list(range(V_LT, V_LT + 16))
        ad, bad, t0 = V_X, V_X + 1, V_X + 2
        a("v_and_b32 v%d, 31, v%d" % (ad, V_LANE))
        a("v_lshlrev_b32 v%d, 6, v%d" % (ad, ad))
        a("s_lshl_b32 s%d, s%d, 11" % (S_T0, S_H))
        a("s_add_u32 s%d, s%d, 0x%x" % (S_T0, S_T0, D_BASE + inst * D_STR))
        loads = ["buffer_load_dwordx4 %s, v%d, %s, s%d offen offset:%d sc1" % (vr(G[4 * i], 4), ad, sr(S_WS, 4), S_T0, i * 16)
                 for i in range(4)]
        self.poll(loads, [G[2 * i] for i in range(8)], bad, t0, "s7")
        a("s_mov_b32 s%d, 0x07060302" % S_T0)
        for i in range(4):
            a("v_perm_b32 v%d, v%d, v%d, s%d" % (V_Q + i, G[4 * i + 3], G[4 * i + 1], S_T0))

    def k_group(self, datas, k):
        a = self.a
        X = [V_X + i for i in range(4)]
        Y = [V_Y + i for i in range(4)]
        for j in range(4):
            for i in range(4):
                a("v_dot2_f32_bf16 v%d, v%d, v%d, %s" % (X[i], datas[i] + j, V_Q + j, "0" if j == 0 else "v%d" % X[i]))
        for d in ("quad_perm:[1,0,3,2]", "quad_perm:[2,3,0,1]", "row_ror:4", "row_ror:8"):
            for i in range(4):
                a("v_add_f32_dpp v%d, v%d, v%d %s" % (X[i], X[i], X[i], d))
        for i in range(4):
            a("v_mov_b32 v%d, v%d" % (Y[i], X[i]))
        for i in range(4):
            a("v_permlane16_swap_b32 v%d, v%d" % (X[i], Y[i]))
        for i in range(4):
            a("v_add_f32_dpp v%d, v%d, v%d quad_perm:[0,1,2,3] row_mask:0xf bank_mask:0x%x" % (V_S + k, X[i], Y[i], 1 << i))

    def softmax(self):
        a = self.a
        S = [V_S + i for i in range(8)]
        self.bf16r(S)
        for r in S:
            a("v_mul_f32 v%d, 0x3d800000, v%d" % (r, r))
        a("v_max3_f32 v%d, v%d, v%d, v%d" % (V_M, S[0], S[1], S[2]))
        a("v_max3_f32 v%d, v%d, v%d, v%d" % (V_M, V_M, S[3], S[4]))
        a("v_max3_f32 v%d, v%d, v%d, v%d" % (V_M, V_M, S[5], S[6]))
        a("v_max_f32 v%d, v%d, v%d" % (V_M, V_M, S[7]))
        self.allreduce([V_M], "v_max_f32", [2, 3, 5], [V_X])
        for r in S:
            a("v_sub_f32 v%d, v%d, v%d" % (r, r, V_M))
        for r in S:
            a("v_mul_f32 v%d, %s, v%d" % (r, LOG2E, r))
        for r in S:
            a("v_exp_f32 v%d, v%d" % (r, r))
        a("v_add_f32 v%d, v%d, v%d" % (V_L, S[0], S[1]))
        for r in S[2:]:
            a("v_add_f32 v%d, v%d, v%d" % (V_L, V_L, r))
        self.allreduce([V_L], "v_add_f32", [2, 3, 5], [V_X])

    def v_tile(self, data, t):
        a = self.a
        P = V_S + (t >> 2)
        n = 4 * (t & 3)
        for j in range(4):
            t0, t1 = V_X + 2 * (j & 1), V_X + 2 * (j & 1) + 1
            a("v_lshlrev_b32 v%d, 16, v%d" % (t0, data + j))
            a("v_and_b32 v%d, s%d, v%d" % (t1, S_HI, data + j))
            if t == 0:
                a("v_mul_f32_dpp v%d, v%d, v%d row_newbcast:%d" % (V_ACC + 2 * j, P, t0, n))
                a("v_mul_f32_dpp v%d, v%d, v%d row_newbcast:%d" % (V_ACC + 2 * j + 1, P, t1, n))
            else:
                a("v_fmac_f32_dpp v%d, v%d, v%d row_newbcast:%d" % (V_ACC + 2 * j, P, t0, n))
                a("v_fmac_f32_dpp v%d, v%d, v%d row_newbcast:%d" % (V_ACC + 2 * j + 1, P, t1, n))

    def s0(self, buf):
        a = self.a
        acc = [V_ACC + i for i in range(8)]
        self.allreduce(acc, "v_add_f32", [5], list(range(V_LT, V_LT + 8)))
        ad = V_X
        a("v_and_b32 v%d, 31, v%d" % (ad, V_LANE))
        a("v_lshlrev_b32 v%d, 5, v%d" % (ad, ad))
        a("s_lshl_b32 s%d, s%d, 10" % (S_T0, S_WAVE))
        a("s_add_u32 s%d, s%d, 0x%x" % (S_T0, S_T0, LDS_SO + buf * 8192))
        a("v_add_u32 v%d, s%d, v%d" % (ad, S_T0, ad))
        a.lds("ds_write_b128 v%d, %s" % (ad, vr(V_ACC, 4)))
        a.lds("ds_write_b128 v%d, %s offset:16" % (ad, vr(V_ACC + 4, 4)))
        a("s_lshl_b32 s%d, s%d, 3" % (S_T0, S_WAVE))
        a("s_add_u32 s%d, s%d, 0x%x" % (S_T0, S_T0, LDS_SML + buf * 64))
        a("v_mov_b32 v%d, s%d" % (ad + 1, S_T0))
        a.lds("ds_write_b64 v%d, %s" % (ad + 1, vr(V_M, 2)))
        a.wait_lg_all()
        a("s_barrier")

    def wave_program(self, role):
        a = self.a
        chain = role in (0, 1)
        CT = list(range(V_POOL, V_POOL + NCHAIN_TMP)) if chain else []
        pool0 = V_POOL + (NCHAIN_TMP if chain else 0)
        rslots = [("r", r) for r in range(pool0, 253, 4)]
        lslots = [("l", j) for j in range(NL)]
        nslots = len(rslots) + len(lslots)
        nret = nslots - MINFREE
        r0 = min(64, int(round(nret * R0_FRAC)))
        r1 = min(64, nret - r0)

        def pick(n):
            return set(int((i + 0.5) * 64 / n) for i in range(n)) if n > 0 else set()
        ret = {0: pick(r0), 1: pick(r1)}

        freeR = deque(rslots)
        freeL = deque(lslots)
        seq = []
        for ph in range(4):
            b = ph & 1
            for idx in range(64):
                seq.append((ph, b, idx))
        where = {}
        tok = {}
        loadptr = [0]

        def outstanding():
            return len(a.vm)

        def pump():
            while loadptr[0] < len(seq):
                ph, b, idx = seq[loadptr[0]]
                if ph >= 2 and idx in ret[b]:
                    loadptr[0] += 1
                    continue
                if outstanding() >= CAP:
                    return
                keep = ph < 2 and idx in ret[b]
                if keep:
                    slot = freeL.popleft() if freeL else (freeR.popleft() if freeR else None)
                else:
                    slot = freeR.popleft() if freeR else (freeL.popleft() if freeL else None)
                if slot is None:
                    return
                where[(b, idx)] = slot
                srd = S_K if idx < 32 else S_V
                kb = S_KB0 if b == 0 else S_KB1
                off = (idx & 31) * 1024
                if slot[0] == "r":
                    if off < 4096:
                        t = a.vmem("buffer_load_dwordx4 %s, v%d, %s, s%d offen offset:%d nt" % (vr(slot[1], 4), V_L16, sr(srd, 4), kb, off))
                    else:
                        a("s_add_u32 s%d, s%d, %d" % (S_T0, kb, off & ~4095))
                        t = a.vmem("buffer_load_dwordx4 %s, v%d, %s, s%d offen offset:%d nt" % (vr(slot[1], 4), V_L16, sr(srd, 4), S_T0, off & 4095))
                else:
                    a("s_add_u32 m0, s%d, %d" % (S_LDSW, slot[1] * 1024))
                    a("s_add_u32 s%d, s%d, %d" % (S_T0, kb, off))
                    t = a.vmem("buffer_load_dwordx4 v%d, %s, s%d offen nt lds" % (V_L16, sr(srd, 4), S_T0))
                tok[(ph, b, idx)] = t
                loadptr[0] += 1

        def fetch(ph, b, idxs):
            regs = []
            lt = 0
            pend = []
            for idx in idxs:
                t = tok.get((ph, b, idx))
                if t is not None:
                    a.wait_vm(t)
            for idx in idxs:
                slot = where[(b, idx)]
                if slot[0] == "r":
                    regs.append(slot[1])
                else:
                    r = V_LT + 4 * lt
                    lt += 1
                    pend.append(a.lds("ds_read_b128 %s, v%d offset:%d" % (vr(r, 4), V_LDST, slot[1] * 1024)))
                    regs.append(r)
            if pend:
                a.wait_lg(pend[-1])
            return regs

        def release(ph, b, idxs):
            for idx in idxs:
                keep = ph < 2 and idx in ret[b]
                if not keep:
                    slot = where.pop((b, idx))
                    (freeR if slot[0] == "r" else freeL).append(slot)

        steps = {}
        if chain:
            cb = role
            T = CT
            def chain_fns(L, TT):
                inst = L * 2 + cb
                fns = [lambda: self.s2(inst, TT),
                       lambda: self.reducer(inst, cb, L, 0, TT),
                       lambda: self.s4(inst, TT),
                       lambda: self.reducer(inst, cb, L, 1, TT)]
                if L == 0:
                    fns.append(lambda: self.s6(cb, 1, TT))
                return fns
            pos0 = [8, 20, 32, 44, 56]
            for p, f in zip(pos0, chain_fns(0, T)):
                steps.setdefault((cb + 1, p), []).append(f)
            if cb == 0:
                for p, f in zip([8, 24, 40, 56], chain_fns(1, T)):
                    steps.setdefault((3, p), []).append(f)

        if chain:
            self.get_epoch()
            self.s6(role, 0, CT)
        else:
            pump()
            self.get_epoch()
        for ph in range(4):
            b = ph & 1
            L = ph >> 1
            a.comment("======== role %d phase %d" % (role, ph))
            pump()
            self.s7(L * 2 + b)
            pump()
            for k in range(8):
                for f in steps.get((ph, 4 * k), []):
                    f()
                    pump()
                idxs = list(range(4 * k, 4 * k + 4))
                regs = fetch(ph, b, idxs)
                self.k_group(regs, k)
                release(ph, b, idxs)
                pump()
            self.softmax()
            for t in range(32):
                for f in steps.get((ph, 32 + t), []):
                    f()
                    pump()
                regs = fetch(ph, b, [32 + t])
                self.v_tile(regs[0], t)
                release(ph, b, [32 + t])
                pump()
            self.s0(ph & 1)
            if chain and role == b:
                self.s1(L * 2 + b, ph & 1, CT)
        if role == 1:
            big = list(range(V_POOL, 256))
            inst = 3
            self.s2(inst, big)
            self.reducer(inst, 1, 1, 0, big)
            self.s4(inst, big)
            self.reducer(inst, 1, 1, 1, big)
        a("s_endpgm")

    def get_epoch(self):
        a = self.a
        lab = a.newlabel("epoch")
        done = a.newlabel("epochdone")
        G = V_LT
        a("v_mov_b32 v%d, 0" % V_X)
        a("s_mov_b32 s%d, 0" % S_SPIN)
        a.label(lab)
        a.vmem("buffer_load_dwordx4 %s, v%d, %s, 0 offen sc1" % (vr(G, 4), V_X, sr(S_DBG, 4)))
        a.wait_vm_all()
        a("v_and_b32 v%d, v%d, v%d" % (V_X + 1, G + 1, G + 3))
        a("v_cmp_ne_u32 vcc, 1, v%d" % (V_X + 1))
        a("s_cbranch_vccz %s" % done)
        a("s_sleep 1")
        a("s_add_u32 s%d, s%d, 1" % (S_SPIN, S_SPIN))
        a("s_cmp_lt_u32 s%d, %d" % (S_SPIN, SPIN_LIMIT))
        a("s_cbranch_scc1 %s" % lab)
        a("s_endpgm")
        a.label(done)
        a("v_mov_b32 v%d, v%d" % (V_TLO, G))
        a("v_and_b32 v%d, 0xff, v%d" % (V_THI, G + 2))

    def build(self):
        a = self.a
        a.raw("; @launch grid=(256,1,1) block=(512,1,1) lds=%d" % 163840)
        a.raw('.amdgcn_target "amdgcn-amd-amdhsa--gfx950"')
        a.raw(".text")
        a.raw(".globl %s" % KNAME)
        a.raw(".p2align 8")
        a.raw(".type %s,@function" % KNAME)
        a.raw("%s:" % KNAME)
        a("s_cmp_lt_u32 s2, 256")
        a("s_cbranch_scc1 L_start")
        a("s_endpgm")
        a.label("L_start")
        a("s_load_dwordx16 s[64:79], s[0:1], 0")
        a("s_load_dwordx8 s[80:87], s[0:1], 64")
        a("v_and_b32 v%d, 63, v0" % V_LANE)
        a("v_lshlrev_b32 v%d, 4, v%d" % (V_L16, V_LANE))
        a("v_lshrrev_b32 v%d, 6, v0" % V_X)
        a("v_readfirstlane_b32 s%d, v%d" % (S_WAVE, V_X))
        a("s_and_b32 s%d, s2, 15" % S_H)
        a("s_lshr_b32 s%d, s2, 4" % S_SP)
        a("s_mov_b32 s%d, 0xff" % S_FF)
        a("s_mov_b32 s%d, 0xffff0000" % S_HI)
        a("s_waitcnt lgkmcnt(0)")
        srds = [(S_X, 64, 1792), (S_K, 66, 1 << 27), (S_V, 68, 1 << 27), (S_WQ, 70, 448 * 4096 * 2), (S_WO, 72, 4096 * 448 * 2),
                (S_WG, 76, 448 * 1792 * 2), (S_WU, 78, 448 * 1792 * 2), (S_WD, 80, 1792 * 448 * 2), (S_OUT, 82, 1792),
                (S_DBG, 84, 256), (S_WS, 86, 1 << 29)]
        for d, p, n in srds:
            a("s_mov_b32 s%d, s%d" % (d, p))
            a("s_and_b32 s%d, s%d, 0xffff" % (d + 1, p + 1))
            a("s_mov_b32 s%d, 0x%x" % (d + 2, n))
            a("s_mov_b32 s%d, 0x20000" % (d + 3))
        a("s_lshl_b32 s%d, s%d, 22" % (S_KB0, S_H))
        a("s_lshl_b32 s%d, s%d, 18" % (S_T0, S_SP))
        a("s_add_u32 s%d, s%d, s%d" % (S_KB0, S_KB0, S_T0))
        a("s_lshl_b32 s%d, s%d, 15" % (S_T0, S_WAVE))
        a("s_add_u32 s%d, s%d, s%d" % (S_KB0, S_KB0, S_T0))
        a("s_add_u32 s%d, s%d, 0x4000000" % (S_KB1, S_KB0))
        a("s_mul_i32 s%d, s%d, %d" % (S_LDSW, S_WAVE, NL * 1024))
        a("v_add_u32 v%d, s%d, v%d" % (V_LDST, S_LDSW, V_L16))
        a("s_cmp_lg_u32 s2, 0")
        a("s_cbranch_scc1 L_noepoch")
        a("s_cmp_lg_u32 s%d, 7" % S_WAVE)
        a("s_cbranch_scc1 L_noepoch")
        a("v_mov_b32 v%d, 0" % V_X)
        a("s_mov_b64 exec, 1")
        a("buffer_load_dwordx2 %s, v%d, %s, 0 offen sc1" % (vr(V_LT, 2), V_X, sr(S_WS, 4)))
        a("s_waitcnt vmcnt(0)")
        a("v_add_co_u32 v%d, vcc, 1, v%d" % (V_LT, V_LT))
        a("v_addc_co_u32 v%d, vcc, 0, v%d, vcc" % (V_LT + 1, V_LT + 1))
        a("buffer_store_dwordx2 %s, v%d, %s, 0 offen sc1" % (vr(V_LT, 2), V_X, sr(S_WS, 4)))
        a("v_mov_b32 v%d, v%d" % (V_LT + 4, V_LT))
        a("v_mov_b32 v%d, 1" % (V_LT + 5))
        a("v_mov_b32 v%d, v%d" % (V_LT + 6, V_LT + 1))
        a("v_mov_b32 v%d, 1" % (V_LT + 7))
        a("buffer_store_dwordx4 %s, v%d, %s, 0 offen sc1" % (vr(V_LT + 4, 4), V_X, sr(S_DBG, 4)))
        a("s_waitcnt vmcnt(0)")
        a("s_mov_b64 exec, -1")
        a.label("L_noepoch")
        a("s_cmp_eq_u32 s%d, 0" % S_WAVE)
        a("s_cbranch_scc1 L_role0")
        a("s_cmp_eq_u32 s%d, 1" % S_WAVE)
        a("s_cbranch_scc1 L_role1")
        for role, lab in ((2, None), (0, "L_role0"), (1, "L_role1")):
            if lab:
                a.label(lab)
            a.vm = []
            a.lg = []
            self.wave_program(role)
        a.raw('.section .rodata,"a"')
        a.raw(".p2align 6")
        a.raw(".amdhsa_kernel %s" % KNAME)
        a.raw("  .amdhsa_next_free_vgpr 256")
        a.raw("  .amdhsa_next_free_sgpr 96")
        a.raw("  .amdhsa_accum_offset 256")
        a.raw("  .amdhsa_group_segment_fixed_size 0")
        a.raw("  .amdhsa_kernarg_size 96")
        a.raw("  .amdhsa_user_sgpr_count 2")
        a.raw("  .amdhsa_user_sgpr_kernarg_segment_ptr 1")
        a.raw("  .amdhsa_system_sgpr_workgroup_id_x 1")
        a.raw(".end_amdhsa_kernel")
        return a.text()


if __name__ == "__main__":
    g = Gen()
    txt = g.build()
    out = sys.argv[1] if len(sys.argv) > 1 else "interleave_layers__mha_block_cached__glu_gated_bilinear__decode.s"
    open(out, "w").write(txt)
    print("instructions:", g.a.ninstr, "bytes:", len(txt))
```
